```python
import torch

def _softmax(x, axis=-1):
    return torch.softmax(x, dim=axis)
def _gelu(x):
    return torch.nn.functional.gelu(x, approximate="tanh")
def _silu(x):
    return torch.nn.functional.silu(x)
def _sigmoid(x):
    return torch.sigmoid(x)
def _layernorm(x, axis=-1, eps=1e-5):
    m = x.mean(dim=axis, keepdim=True)
    v = x.var(dim=axis, keepdim=True, unbiased=False)
    return (x - m) / torch.sqrt(v + eps)
def _scatter_add(tgt, idx, src, axis=0):
    return tgt.clone().index_add_(axis, idx, src)
def _segment_sum(src, seg, n):
    out = torch.zeros((n,) + src.shape[1:], dtype=src.dtype)
    return out.index_add_(0, seg, src)
def _pad(x, pw):
    flat = tuple(v for pair in reversed(pw) for v in pair)
    return torch.nn.functional.pad(x, flat)

kernel_name = 'parallel_sum__mha_block__glu_gated_glu__prompt'

def setup_inputs():

    _w = (lambda a: (lambda t: t.to(torch.bfloat16) if t.is_floating_point() else t)(torch.as_tensor(a)))
    def _A_setup():
        B, S, D, H = 1, 2048, 640, 32
        return {
            "x": _w((lambda *s: torch.randn(*s, dtype=torch.bfloat16) * 0.05)(B, S, D)),
            "wqkv": _w((lambda *s: torch.randn(*s, dtype=torch.bfloat16) * 0.05)(D, 3 * D)),
            "wo": _w((lambda *s: torch.randn(*s, dtype=torch.bfloat16) * 0.05)(D, D)),
        }
    _A_in = _A_setup()

    def _B_setup():
        B, S, D, F = 1, 2048, 640, 1536
        return {
            "x": _w((lambda *s: torch.randn(*s, dtype=torch.bfloat16) * 0.05)(B, S, D)),
            "w_gate": _w((lambda *s: torch.randn(*s, dtype=torch.bfloat16) * 0.05)(D, F)),
            "w_up": _w((lambda *s: torch.randn(*s, dtype=torch.bfloat16) * 0.05)(D, F)),
            "w_down": _w((lambda *s: torch.randn(*s, dtype=torch.bfloat16) * 0.05)(F, D)),
        }
    _B_in = _B_setup()

    return {
        "A_x": _A_in["x"],
        "A_wqkv": _A_in["wqkv"],
        "A_wo": _A_in["wo"],
        "B_x": _B_in["x"],
        "B_w_gate": _B_in["w_gate"],
        "B_w_up": _B_in["w_up"],
        "B_w_down": _B_in["w_down"],
    }

def reference(A_x, A_wqkv, A_wo, B_x, B_w_gate, B_w_up, B_w_down):
    def _A_ref(x, wqkv, wo):
        B, S, D = x.shape
        H = 32
        Dh = D // H
        qkv = (lambda x, *d: x.permute(*d))((x @ wqkv).reshape(B, S, 3, H, Dh), 2, 0, 3, 1, 4)
        q, k, v = qkv[0], qkv[1], qkv[2]
        scores = torch.einsum("bhqd,bhkd->bhqk", q, k) * (Dh ** -0.5)
        p = _softmax(scores, axis=-1)
        o = torch.einsum("bhqk,bhkd->bhqd", p, v)
        return (lambda x, *d: x.permute(*d))(o, 0, 2, 1, 3).reshape(B, S, D) @ wo

    def _B_ref(x, w_gate, w_up, w_down):
        g = torch.einsum("bsd,df->bsf", x, w_gate)
        u = torch.einsum("bsd,df->bsf", x, w_up)
        h = _sigmoid(g) * u
        return torch.einsum("bsf,fd->bsd", h, w_down)

    x = A_x
    xn = _layernorm(x, axis=-1)
    return x + _A_ref(xn, A_wqkv, A_wo) + _B_ref(xn, B_w_gate, B_w_up, B_w_down)
```

```python
import re

TRANS = {"v_exp_f32", "v_log_f32", "v_rcp_f32", "v_rsq_f32", "v_sqrt_f32", "v_sin_f32", "v_cos_f32"}
RMW_DST = ("v_fmac_f32", "v_dot2c_f32_bf16", "v_smfmac_", "v_pk_fmac", "v_writelane_b32")

def regs_of(tok):
    tok = tok.strip()
    tok = re.sub(r"^-|^\||\|$|^abs\(|\)$|^neg\(", "", tok)
    tok = tok.strip("|")
    m = re.fullmatch(r"([vsa])\[(\d+):(\d+)\]", tok)
    if m:
        return {f"{m.group(1)}{i}" for i in range(int(m.group(2)), int(m.group(3)) + 1)}
    m = re.fullmatch(r"([vsa])(\d+)", tok)
    if m:
        return {tok}
    if tok in ("vcc", "vcc_lo", "vcc_hi"):
        return {"vcc"}
    if tok in ("exec", "exec_lo", "exec_hi"):
        return {"exec"}
    if tok == "m0":
        return {"m0"}
    return set()

def mfma_passes(op):
    if "32x32x4_2b" in op: return 16
    if "32x32" in op: return 8
    if "16x16" in op: return 4
    if "4x4" in op: return 2
    raise ValueError(op)

class Ins:
    def __init__(self, text, note=None):
        self.text = text
        self.note = note
        t = text.split(";")[0].strip()
        self.is_label = t.endswith(":")
        self.is_dir = t.startswith(".") and not self.is_label
        parts = t.split(None, 1)
        self.op = parts[0] if parts else ""
        op = self.op
        for suf in ("_e32", "_e64", "_sdwa", "_dpp"):
            if op.endswith(suf): op = op[: -len(suf)]
        self.base = op
        rest = parts[1] if len(parts) > 1 else ""
        ops = [x.strip() for x in re.split(r",(?![^\[]*\])", rest)] if rest else []
        mods = ""
        if ops:
            sp = ops[-1].split(None, 1)
            ops[-1] = sp[0]
            mods = sp[1] if len(sp) > 1 else ""
        self.ops = ops
        self.mods = " " + mods + " "
        self.w = set(); self.r = set()
        self.kind = "other"
        b = self.base
        R = lambda i: regs_of(ops[i]) if i < len(ops) else set()
        allr = lambda a: set().union(*[regs_of(x) for x in ops[a:]]) if len(ops) > a else set()
        if self.is_label or self.is_dir or not b:
            self.kind = "meta"
        elif b.startswith("v_mfma") or b.startswith("v_smfmac"):
            self.kind = "mfma"; self.passes = mfma_passes(b)
            self.w = R(0); self.A = R(1); self.B = R(2)
            if b.startswith("v_smfmac"):
                self.C = R(0); self.B = self.B | R(3)
            else:
                self.C = R(3)
            self.r = self.A | self.B | self.C
        elif b.startswith("v_cmp"):
            self.kind = "valu"; self.w = R(0); self.r = allr(1)
            if b.startswith("v_cmpx"): self.w |= {"exec"}
        elif b in ("v_readfirstlane_b32", "v_readlane_b32"):
            self.kind = "valu"; self.w = R(0); self.r = allr(1)
        elif (b.startswith("v_permlane") and "swap" in b) or b == "v_swap_b32":
            self.kind = "valu"; self.w = R(0) | R(1); self.r = R(0) | R(1)
        elif b.startswith("v_"):
            self.kind = "valu"; self.w = R(0); self.r = allr(1)
            if b in ("v_add_co_u32", "v_sub_co_u32", "v_addc_co_u32", "v_subb_co_u32", "v_div_scale_f32"):
                self.w |= R(1); self.r = allr(2)
            if any(b.startswith(x) for x in RMW_DST): self.r |= R(0)
            if b == "v_cndmask_b32" and len(ops) == 3: self.r |= {"vcc"}
            if "UNUSED_PRESERVE" in self.mods: self.r |= R(0)
        elif b.startswith("ds_"):
            self.kind = "ds"
            if b.startswith("ds_read") or b.startswith("ds_bpermute") or b.startswith("ds_permute") or b.startswith("ds_swizzle") or "_rtn" in b:
                self.w = R(0); self.r = allr(1)
            else:
                self.r = allr(0)
        elif b.startswith("buffer_") or b.startswith("global_"):
            self.kind = "vmem"
            self.lds_dma = " lds " in self.mods or "_lds_" in b
            if b in ("buffer_inv", "buffer_wbl2"):
                pass
            elif self.lds_dma:
                self.r = allr(0) | {"m0"}
            elif "_load_" in b:
                self.w = R(0); self.r = allr(1)
                if "d16" in b: self.r |= R(0)
            elif "atomic" in b and " sc0 " in self.mods:
                self.w = R(0); self.r = allr(0) if b.startswith("buffer") else allr(1)
            else:
                self.r = allr(0)
            self.wide_store = ("store" in b) and ("x3" in b or "x4" in b)
            if self.wide_store:
                self.data = R(0) if b.startswith("buffer") else R(1)
        elif b.startswith("s_load") or b in ("s_memtime", "s_memrealtime") or b.startswith("s_buffer_load"):
            self.kind = "smem"; self.w = R(0); self.r = allr(1)
        elif b == "s_waitcnt":
            self.kind = "wait"
        elif b == "s_nop":
            self.kind = "nop"; self.n = int(ops[0], 0) + 1
        elif b in ("s_barrier", "s_endpgm", "s_setprio", "s_sleep"):
            self.kind = "sctl"
        elif b.startswith("s_cbranch") or b == "s_branch":
            self.kind = "branch"
        elif b.startswith("s_cmp") or b.startswith("s_bitcmp"):
            self.kind = "salu"; self.r = allr(0); self.w = {"scc"}
        elif b.startswith("s_"):
            self.kind = "salu"; self.w = R(0); self.r = allr(1)
            if "saveexec" in b: self.w |= {"exec"}; self.r |= {"exec"}
            if b in ("s_addk_i32", "s_mulk_i32"): self.r |= R(0)
        else:
            raise ValueError("unknown instr: " + text)
        self.trans = b in TRANS
        self.dot = b.startswith("v_dot")

    def states(self):
        if self.kind == "meta": return 0
        if self.kind == "nop": return self.n
        return 1

def need_states(p, c):
    n = 0
    isv = lambda s: {x for x in s if x[0] in "va" and x != "vcc"}
    issg = lambda s: {x for x in s if x[0] == "s" and x != "scc" or x == "vcc"}
    if p.kind == "valu":
        pw = isv(p.w)
        if c.kind == "mfma" and pw & c.r: n = max(n, 2)
        if c.kind == "valu":
            if p.trans and not c.trans and pw & c.r: n = max(n, 1)
            if p.trans and c.trans and pw & c.r: n = max(n, 1)
            if c.base.startswith("v_permlane") and pw & c.r: n = max(n, 2)
            if c.base in ("v_readfirstlane_b32", "v_readlane_b32") and pw & c.r: n = max(n, 1)
            if ("row_" in c.mods or "quad_perm" in c.mods or "wave_" in c.mods) and pw & c.r: n = max(n, 2)
            if issg(p.w) & c.r: n = max(n, 4 if c.base in ("v_readlane_b32", "v_writelane_b32") else 2)
            if "exec" in p.w: n = max(n, 5)
            if ("op_sel" in p.mods and "op_sel_hi" not in p.mods or "dst_sel" in p.mods) and pw & (c.r | c.w): n = max(n, 1)
        if p.dot:
            if c.kind in ("valu", "mfma", "ds", "vmem") and pw & (c.r | c.w):
                same_acc = c.dot and c.base == p.base and not (pw & (regs_of(c.ops[1]) | regs_of(c.ops[2])))
                if not same_acc: n = max(n, 3)
        if c.kind == "vmem" and issg(p.w) & c.r: n = max(n, 5)
        if c.kind == "mfma" and "exec" in p.w: n = max(n, 4)
        if c.kind in ("salu", "branch") and issg(p.w) & (c.r | ({"vcc"} if "vcc" in c.base else set())): n = max(n, 1 if c.kind == "salu" else 5)
    if p.kind == "mfma":
        tab_rw = {2: 5, 4: 8, 8: 12, 16: 20}[p.passes]
        tab_c = {2: 4, 4: 6, 8: 10, 16: 18}[p.passes]
        if c.kind == "mfma":
            if p.w & (c.A | c.B): n = max(n, tab_rw)
            if p.w & c.C:
                if p.w == c.C and p.passes == c.passes: n = max(n, 2 if p.passes == 2 else 0)
                else: n = max(n, tab_c)
            elif p.w & c.w:
                if c.passes < p.passes: n = max(n, tab_c)
        elif c.kind in ("valu", "ds", "vmem"):
            if p.w & (c.r | c.w): n = max(n, tab_rw)
            if c.kind == "valu" and p.C & c.w: n = max(n, {2: 1, 4: 3, 8: 7, 16: 15}[p.passes])
    if p.kind == "salu" and "m0" in p.w and c.kind == "vmem" and getattr(c, "lds_dma", False): n = max(n, 1)
    if p.kind == "vmem" and getattr(p, "wide_store", False) and c.kind in ("valu", "mfma", "ds", "vmem") and p.data & c.w:
        n = max(n, 2)
    return n

class Prog:
    def __init__(self):
        self.ins = []
    def e(self, text, note=None):
        for line in text.split("\n"):
            line = line.strip()
            if not line or line.startswith(";"): continue
            self.ins.append(Ins(line, note))
    def label(self, name): self.e(name + ":")
    def extend(self, lst):
        for x in lst: self.e(x)

def _scan_waits(ins, start_lgkm, start_vm):
    lg = [set(x) for x in start_lgkm]; vm = [set(x) for x in start_vm]
    smem_pending = any("__smem" in x for x in lg)
    needs = []
    for it in ins:
        nl = nv = None
        if it.kind == "wait":
            m = re.search(r"lgkmcnt\((\d+)\)", it.text)
            if m:
                k = int(m.group(1))
                if k == 0: lg = []
                elif not any("__smem" in x for x in lg): lg = lg[len(lg) - k:] if k < len(lg) else lg
            m = re.search(r"vmcnt\((\d+)\)", it.text)
            if m:
                k = int(m.group(1)); vm = vm[len(vm) - k:] if k < len(vm) else vm
                if k == 0: vm = []
            needs.append((None, None)); continue
        touch = it.r | it.w
        for i in range(len(lg) - 1, -1, -1):
            if lg[i] & touch:
                nl = len(lg) - 1 - i
                if any("__smem" in x for x in lg): nl = 0
                break
        for i in range(len(vm) - 1, -1, -1):
            if vm[i] & touch:
                nv = len(vm) - 1 - i; break
        if nl is not None:
            nl = min(nl, 15); lg = lg[len(lg) - nl:] if nl else []
        if nv is not None:
            nv = min(nv, 63); vm = vm[len(vm) - nv:] if nv else []
        needs.append((nl, nv))
        if it.kind == "ds": lg.append(set(it.w))
        elif it.kind == "smem": lg.append(set(it.w) | {"__smem"})
        elif it.kind == "vmem" and it.base not in ("buffer_inv", "buffer_wbl2"): vm.append(set(it.w))
    return needs, lg, vm

def finalize(prog, loops=()):
    ins = prog.ins
    labels = {it.op[:-1]: i for i, it in enumerate(ins) if it.is_label}
    back = []
    for i, it in enumerate(ins):
        if it.kind == "branch" and it.ops[0] in labels and labels[it.ops[0]] < i:
            back.append((labels[it.ops[0]], i))
    needs, _, _ = _scan_waits(ins, [], [])
    needs = list(needs)
    def merge(a, b):
        return tuple(x if y is None else y if x is None else min(x, y) for x, y in zip(a, b))
    for (lo, hi) in back:
        tmp = []
        for j in range(0, hi + 1):
            if needs[j] != (None, None): tmp.append(Ins(_wtext(needs[j])))
            tmp.append(ins[j])
        _, lg, vm = _scan_waits(tmp, [], [])
        n2, _, _ = _scan_waits(ins[lo:hi + 1], lg, vm)
        for j in range(lo, hi + 1): needs[j] = merge(needs[j], n2[j - lo])
    out = []
    for j, it in enumerate(ins):
        if needs[j] != (None, None): out.append(Ins(_wtext(needs[j]), "auto"))
        out.append(it)
    def pad(seq, prefix):
        res = []
        hist = list(prefix)
        for it in seq:
            if it.kind != "meta":
                dist = 0; req = 0
                for p in reversed(hist):
                    if dist >= 20: break
                    if p.kind != "meta":
                        k = need_states(p, it) - dist
                        req = max(req, k)
                    dist += p.states()
                while req > 0:
                    k = min(req, 16); nop = Ins(f"s_nop {k-1}", "haz"); res.append(nop); hist.append(nop); req -= k
            res.append(it); hist.append(it)
        return res
    out = pad(out, [])
    labels = {it.op[:-1]: i for i, it in enumerate(out) if it.is_label}
    for i, it in enumerate(list(out)):
        if it.kind == "branch" and it.ops[0] in labels:
            tgt = labels[it.ops[0]]
            if tgt > i and it.note != "far":
                for x in out[i:tgt]:
                    assert x.kind not in ("wait", "ds", "vmem", "smem"), f"memory op/wait inside skipped block {it.text}: {x.text}"
            seq = out[tgt:tgt + 24]
            chk = pad(seq, out[max(0, i - 24):i + 1])
            if len(chk) != len(seq):
                raise RuntimeError(f"hazard across branch {it.text} at {i}: add padding manually; " + "; ".join(x.text for x in chk[:12]))
    return out

def _wtext(n):
    s = "s_waitcnt"
    if n[1] is not None: s += f" vmcnt({n[1]})"
    if n[0] is not None: s += f" lgkmcnt({n[0]})"
    return s

def render(ins):
    o = []
    for it in ins:
        if it.is_label: o.append(it.text)
        else: o.append("    " + it.text + (f"   ; {it.note}" if it.note else ""))
    return "\n".join(o) + "\n"

def interleave(main, side, start=0, per=1, every=1):
    out = []; si = 0
    for i, m in enumerate(main):
        out.append(m)
        if i >= start and (i - start) % every == 0:
            for _ in range(per):
                if si < len(side): out.append(side[si]); si += 1
    out += side[si:]
    return out
```

```python
from asmlib import *
QK_OFF = 0
V_OFF  = 160 * 32768
HO_OFF = V_OFF + 32 * 64 * 1280
WB_OFF = HO_OFF + 64 * 136 * 1024
WS_END = WB_OFF + 20 * 136 * 1024
OOB = 0x40000000
LOG2E = 1.4426950408889634
import struct
def f2u(x): return "0x%08x" % struct.unpack("<I", struct.pack("<f", x))[0]

def resolve_tags(p):
    out = []
    vm = []
    for it in p.ins:
        if it.note and it.note.startswith("WAITDMA:"):
            tag = it.note.split(":")[1]
            idx = max(i for i, t in enumerate(vm) if t == tag)
            n = len(vm) - 1 - idx
            assert n <= 63
            out.append(Ins(f"s_waitcnt vmcnt({n})", "dma " + tag))
            continue
        if it.kind == "vmem":
            vm.append(it.note.split(":")[1] if it.note and it.note.startswith("dma:") else None)
        out.append(it)
    p.ins = out

def waitdma(p, tag): p.e("s_nop 0", "WAITDMA:" + tag)

def srd(p, d, base, size):
    p.e(f"s_mov_b32 s{d}, s{base}")
    p.e(f"s_and_b32 s{d+1}, s{base+1}, 0xffff")
    p.e(f"s_mov_b32 s{d+2}, {size}")
    p.e(f"s_mov_b32 s{d+3}, 0x00020000")

def kernel_text(name, body, vgpr, sgpr=102):
    return f""".text
.globl {name}
.p2align 8
.type {name},@function
{name}:
{body}"""

def kd_text(name, vgpr, sgpr=102):
    return f""".section .rodata,"a"
.p2align 6
.amdhsa_kernel {name}
  .amdhsa_next_free_vgpr {vgpr}
  .amdhsa_next_free_sgpr {sgpr}
  .amdhsa_accum_offset {(vgpr+3)//4*4}
  .amdhsa_group_segment_fixed_size 0
  .amdhsa_kernarg_size 80
  .amdhsa_user_sgpr_count 2
  .amdhsa_user_sgpr_kernarg_segment_ptr 1
  .amdhsa_system_sgpr_workgroup_id_x 1
.end_amdhsa_kernel
"""
```

```python
from common import *

LDS_ST  = 131072
LDS_CS  = LDS_ST + 4096
LDS_PV  = LDS_CS + 10240
K1_LDS  = LDS_PV + 8 * 512

sX, sWA, sG, sU, sWS, sRL = 8, 12, 16, 20, 24, 28
s_w, s_rt, s_ch, s_rb, s_cg, s_tile0 = 36, 37, 38, 39, 40, 41
s_offX, s_offA, s_offB, s_m0base, s_tmp, s_tmp2, s_ones, s_c = 42, 43, 44, 45, 46, 47, 48, 49
s_st = 50
s_hst = 51
s_t3, s_t4, s_t5 = 52, 53, 54
vXs0, vXs1, vWAs, vGs, vUs, vXb, vWA0, vWA1, vWB = 1, 2, 3, 4, 5, 6, 7, 8, 9
vSum, vSq, vCs0, vCs1 = 10, 11, 12, 13
vLane, vST, vCSw, vCSr, vPVw, vPVr, vStA = 14, 15, 16, 17, 18, 19, 20
vA, vB, vA2, vB2 = 21, 22, 23, 24
vT = 25
WBUF = 32
ACC = [48, 64, 80]
XF = 96
def X(ks): return f"v[{XF+4*ks}:{XF+4*ks+3}]"
def vr(a, n): return f"v[{a}:{a+n-1}]"

def bf16r(dst, src):
    return [f"v_cvt_pk_bf16_f32 v{dst}, v{src}, v{src}", f"v_lshlrev_b32 v{dst}, 16, v{dst}"]

def gen_variant(isv):
    p = Prog(); e = p.e
    L = "V" if isv else "Q"
    e("s_load_dwordx4 s[56:59], s[0:1], 0")
    e("s_load_dwordx2 s[60:61], s[0:1], 16")
    e("s_load_dwordx4 s[64:67], s[0:1], 32")
    e("s_load_dwordx2 s[68:69], s[0:1], 48")
    e("s_load_dwordx2 s[70:71], s[0:1], 72")
    e(f"v_lshrrev_b32 v{vT}, 6, v0")
    e(f"v_and_b32 v{vLane}, 63, v0")
    e(f"v_readfirstlane_b32 s{s_w}, v{vT}")
    e(f"s_and_b32 s{s_rt}, s{s_w}, 3")
    e(f"s_lshr_b32 s{s_ch}, s{s_w}, 2")
    e(f"s_mov_b32 s{s_ones}, 0x3f803f80")
    t0, t1, t2, t3 = vT, vT + 1, vT + 2, vT + 3
    e(f"v_lshrrev_b32 v{t0}, 3, v{vLane}")
    e(f"s_lshl_b32 s{s_tmp}, s{s_rb}, 7")
    e(f"s_lshl_b32 s{s_tmp2}, s{s_w}, 4")
    e(f"s_add_u32 s{s_tmp}, s{s_tmp}, s{s_tmp2}")
    e(f"v_add_u32 v{t0}, s{s_tmp}, v{t0}")
    e(f"v_mul_u32_u24 v{t0}, 1280, v{t0}")
    e(f"v_lshrrev_b32 v{t1}, 4, v{vLane}")
    e(f"v_and_b32 v{t2}, 7, v{vLane}")
    e(f"v_xor_b32 v{t2}, v{t2}, v{t1}")
    e(f"v_lshl_add_u32 v{vXs0}, v{t2}, 4, v{t0}")
    e(f"v_xor_b32 v{t2}, 4, v{t2}")
    e(f"v_lshl_add_u32 v{vXs1}, v{t2}, 4, v{t0}")
    e(f"v_add_u32 v{vXs1}, {8*1280}, v{vXs1}")
    e(f"s_lshl_b32 s{s_tmp}, s{s_w}, 3")
    e(f"v_add_u32 v{t0}, s{s_tmp}, v{t1}")
    e(f"v_mul_u32_u24 v{t0}, 3840, v{t0}")
    e(f"v_bfe_u32 v{t2}, v{vLane}, 2, 2")
    e(f"v_xor_b32 v{t2}, v{t2}, v{t1}")
    e(f"v_lshl_add_u32 v{t0}, v{t2}, 6, v{t0}")
    e(f"v_and_b32 v{t2}, 3, v{vLane}")
    e(f"v_lshl_add_u32 v{t0}, v{t2}, 4, v{t0}")
    e(f"s_lshl_b32 s{s_tmp}, s{s_tile0}, 6")
    e(f"v_add_u32 v{vWAs}, s{s_tmp}, v{t0}")
    e(f"v_lshrrev_b32 v{t0}, 2, v{vLane}")
    e(f"s_lshl_b32 s{s_tmp}, s{s_w}, 4")
    e(f"v_add_u32 v{t0}, s{s_tmp}, v{t0}")
    e(f"v_mul_u32_u24 v{t0}, 3072, v{t0}")
    e(f"s_mul_i32 s{s_tmp}, s{s_cg}, 192")
    e(f"v_add_u32 v{t0}, s{s_tmp}, v{t0}")
    e(f"v_lshl_add_u32 v{vGs}, v{t2}, 4, v{t0}")
    e(f"v_xor_b32 v{t2}, 2, v{t2}")
    e(f"v_lshl_add_u32 v{vUs}, v{t2}, 4, v{t0}")
    e("s_waitcnt lgkmcnt(0)")
    srd(p, sX, 56, 2048 * 1280); srd(p, sWA, 58, 640 * 3840); srd(p, sG, 64, 640 * 3072); srd(p, sU, 66, 640 * 3072)
    srd(p, sWS, 70, WS_END)
    e(f"s_lshl_b32 s{s_m0base}, s{s_w}, 11")

    def dmaA(s):
        slot = (s % 4) * 32768
        g = []
        for i in range(2):
            g.append(([f"s_add_u32 m0, s{s_m0base}, {slot + i*1024}", f"s_mov_b32 s{s_offX}, {s*128}",
                      f"buffer_load_dwordx4 v{vXs0 if i == 0 else vXs1}, s[{sX}:{sX+3}], s{s_offX} offen lds"], f"A{s}"))
        for i in range(2):
            g.append(([f"s_add_u32 m0, s{s_m0base}, {slot + 16384 + i*1024}", f"s_mov_b32 s{s_offA}, {s*64*3840 + i*15360}",
                      f"buffer_load_dwordx4 v{vWAs}, s[{sWA}:{sWA+3}], s{s_offA} offen lds"], f"A{s}"))
        return g
    def dmaB(b):
        hs = (4 + b) % 8; ps, st = divmod(b, 5)
        g = []
        for i in range(2):
            g.append(([f"s_lshr_b32 s{s_offB}, s{s_m0base}, 1", f"s_add_u32 m0, s{s_offB}, {hs*16384 + i*8192}",
                      f"s_mov_b32 s{s_offB}, {st*128*3072 + ps*64}",
                      f"buffer_load_dwordx4 v{vGs if i == 0 else vUs}, s[{sG if i == 0 else sU}:{(sG if i == 0 else sU)+3}], s{s_offB} offen lds"], f"B{b}"))
        return g
    def emit_dma(g):
        lines, tag = g
        for l in lines[:-1]: e(l)
        e(lines[-1], "dma:" + tag)
    for g in dmaA(0) + dmaA(1): emit_dma(g)

    RL = XF + 128
    vRa = [vT + 4, vT + 5]
    e(f"s_lshl_b32 s{s_t3}, s2, 3")
    e(f"s_add_u32 s{s_t3}, s{s_t3}, s{s_w}")
    for fi in range(2):
        if fi == 1: e(f"s_add_u32 s{s_t3}, s{s_t3}, 2048")
        e(f"s_mul_i32 s{s_t4}, s{s_t3}, 30841")
        e(f"s_lshr_b32 s{s_t4}, s{s_t4}, 22")
        e(f"s_mul_i32 s{s_tmp}, s{s_t4}, 136")
        e(f"s_sub_u32 s{s_t5}, s{s_t3}, s{s_tmp}")
        e(f"s_cmp_lt_u32 s{s_t5}, 96")
        e(f"s_cselect_b32 s{sRL}, s68, s60")
        e(f"s_cselect_b32 s{sRL+1}, s69, s61")
        e(f"s_mov_b32 s{sRL+2}, {640*1280}")
        e(f"s_cselect_b32 s{sRL+2}, {1536*1280}, s{sRL+2}")
        e(f"s_and_b32 s{sRL+1}, s{sRL+1}, 0xffff")
        e(f"s_mov_b32 s{sRL+3}, 0x00020000")
        e(f"s_lshl_b32 s{s_tmp}, s{s_t5}, 4")
        e(f"s_sub_u32 s{s_tmp2}, s{s_t5}, 96")
        e(f"s_mul_i32 s{s_tmp2}, s{s_tmp2}, 20")
        e(f"s_cmp_lt_u32 s{s_t5}, 96")
        e(f"s_cselect_b32 s{s_tmp}, s{s_tmp}, s{s_tmp2}")
        e(f"s_mul_i32 s{s_tmp2}, s{s_t5}, 80")
        e(f"s_sub_u32 s{s_tmp2}, s{s_tmp2}, {128*80-16}")
        e(f"s_cmp_lt_u32 s{s_t5}, 128")
        e(f"s_cselect_b32 s{s_tmp}, s{s_tmp}, s{s_tmp2}")
        e(f"s_mov_b32 s{s_tmp2}, {40*1280}")
        e(f"s_mov_b32 s{s_st}, {20*1280}")
        e(f"s_cselect_b32 s{s_tmp2}, {4*1280}, s{s_tmp2}")
        e(f"s_cselect_b32 s{s_st}, {8*1280}, s{s_st}")
        e(f"s_mul_i32 s{s_tmp}, s{s_tmp}, 1280")
        e(f"s_lshl_b32 s{s_hst}, s{s_t4}, 6")
        e(f"s_add_u32 s{s_tmp}, s{s_tmp}, s{s_hst}")
        e(f"v_lshrrev_b32 v{t0}, 5, v{vLane}")
        e(f"v_mul_lo_u32 v{t0}, v{t0}, s{s_tmp2}")
        e(f"v_and_b32 v{t1}, 31, v{vLane}")
        e(f"v_lshl_add_u32 v{t0}, v{t1}, 1, v{t0}")
        e(f"v_add_u32 v{t0}, s{s_tmp}, v{t0}")
        e(f"s_lshl_b32 s{s_tmp}, s{s_t3}, 10")
        e(f"s_add_u32 s{s_tmp}, s{s_tmp}, {WB_OFF}")
        e(f"s_cmp_lt_u32 s{s_t3}, 2720")
        e(f"s_cselect_b32 s{s_tmp}, s{s_tmp}, {OOB}")
        e(f"s_cselect_b32 s{s_tmp2}, 0, {OOB}")
        e(f"v_lshl_add_u32 v{vRa[fi]}, v{vLane}, 4, s{s_tmp}")
        e(f"v_add_u32 v{t0}, s{s_tmp2}, v{t0}")
        for j in range(8):
            so = "0" if j < 4 else f"s{s_st}"
            e(f"buffer_load_ushort v{RL + 8*fi + j}, v{t0}, s[{sRL}:{sRL+3}], {so} offen offset:{(j%4)*1280}")
    for g in dmaA(2) + dmaA(3): emit_dma(g)
    relayout_fin = []
    for fi in range(2):
        for r in range(4):
            relayout_fin.append(f"v_lshl_or_b32 v{RL+8*fi+r}, v{RL+8*fi+2*r+1}, 16, v{RL+8*fi+2*r}")
        relayout_fin.append(f"buffer_store_dwordx4 {vr(RL+8*fi,4)}, v{vRa[fi]}, s[{sWS}:{sWS+3}], 0 offen")

    e(f"v_and_b32 v{t0}, 31, v{vLane}")
    e(f"v_lshrrev_b32 v{t1}, 5, v{vLane}")
    e(f"v_bfe_u32 v{t2}, v{vLane}, 1, 3")
    e(f"v_xor_b32 v{t2}, v{t2}, v{t1}")
    e(f"s_lshl_b32 s{s_tmp}, s{s_rt}, 5")
    e(f"v_add_u32 v{t0}, s{s_tmp}, v{t0}")
    e(f"v_lshlrev_b32 v{vXb}, 7, v{t0}")
    e(f"v_lshl_add_u32 v{vXb}, v{t2}, 4, v{vXb}")
    e(f"v_lshlrev_b32 v{vST}, 5, v{t0}")
    e(f"v_add_u32 v{vST}, {LDS_ST}, v{vST}")
    e(f"s_lshl_b32 s{s_tmp}, s{s_rb}, 7")
    e(f"v_add_u32 v{t0}, s{s_tmp}, v{t0}")
    e(f"v_lshlrev_b32 v{t0}, 4, v{t0}")
    e(f"v_lshl_add_u32 v{vStA}, v{t1}, 15, v{t0}")
    e(f"v_bfe_u32 v{t0}, v{vLane}, 2, 2")
    e(f"v_lshl_add_u32 v{t2}, v{t1}, 3, v{t0}")
    e(f"v_bfe_u32 v{t3}, v{vLane}, 4, 1")
    e(f"v_lshlrev_b32 v{vWA0}, 8, v{t2}")
    e(f"s_lshl_b32 s{s_tmp}, s{s_ch}, 1")
    e(f"v_xor_b32 v{t0}, s{s_tmp}, v{t0}")
    e(f"v_lshl_add_u32 v{vWA0}, v{t0}, 6, v{vWA0}")
    e(f"v_lshl_add_u32 v{vWA0}, v{t3}, 5, v{vWA0}")
    e(f"v_and_b32 v{t0}, 3, v{vLane}")
    e(f"v_lshl_add_u32 v{vWA0}, v{t0}, 3, v{vWA0}")
    e(f"v_add_u32 v{vWA0}, 16384, v{vWA0}")
    e(f"v_xor_b32 v{vWA1}, 64, v{vWA0}")
    e(f"v_lshlrev_b32 v{vWB}, 6, v{t2}")
    e(f"v_lshl_add_u32 v{vWB}, v{t3}, 13, v{vWB}")
    e(f"v_xor_b32 v{t3}, s{s_ch}, v{t3}")
    e(f"v_lshl_add_u32 v{vWB}, v{t3}, 5, v{vWB}")
    e(f"v_lshl_add_u32 v{vWB}, v{t0}, 3, v{vWB}")
    e(f"v_add_u32 v{vWB}, 0x10000, v{vWB}")
    e(f"v_and_b32 v{t0}, 31, v{vLane}")
    e(f"v_lshlrev_b32 v{vCSr}, 5, v{t0}")
    e(f"s_lshl_b32 s{s_tmp}, s{s_ch}, 10")
    e(f"s_add_u32 s{s_tmp}, s{s_tmp}, {LDS_CS}")
    e(f"v_add_u32 v{vCSr}, s{s_tmp}, v{vCSr}")
    e(f"s_lshl_b32 s{s_tmp}, s{s_rt}, 3")
    e(f"v_lshl_add_u32 v{vCSw}, v{t1}, 2, v{vCSr}")
    e(f"v_add_u32 v{vCSw}, s{s_tmp}, v{vCSw}")
    e(f"s_lshl_b32 s{s_tmp}, s{s_w}, 9")
    e(f"s_add_u32 s{s_tmp}, s{s_tmp}, {LDS_PV}")
    e(f"v_lshl_add_u32 v{vPVw}, v{t0}, 2, s{s_tmp}")
    e(f"v_lshl_add_u32 v{vPVr}, v{t1}, 4, s{s_tmp}")
    for r in (vSum, vSq, vCs0, vCs1): e(f"v_mov_b32 v{r}, 0")
    e(f"s_cmp_lt_u32 s{s_cg}, 5")
    e(f"s_cselect_b32 s{s_c}, {f2u(LOG2E/20**0.5)}, 1.0")
    e(f"s_lshl_b32 s{s_tmp}, s{s_rb}, 2")
    e(f"s_add_u32 s{s_tmp}, s{s_tmp}, s{s_rt}")
    e(f"s_mul_i32 s{s_hst}, s{s_tmp}, 136")
    e(f"s_mul_i32 s{s_tmp2}, s{s_cg}, 6")
    e(f"s_add_u32 s{s_hst}, s{s_hst}, s{s_tmp2}")
    e(f"s_add_u32 s{s_hst}, s{s_hst}, s{s_ch}")
    e(f"s_lshl_b32 s{s_hst}, s{s_hst}, 10")
    e(f"s_add_u32 s{s_hst}, s{s_hst}, {HO_OFF}")
    e(f"s_mul_i32 s{s_t5}, s{s_tmp}, 1280")

    csoffA = lambda i: 2 * i * 1024
    csoffB = lambda ps: (4 + 2 * ps) * 1024

    def readsA(ks):
        s, j = divmod(ks, 4); slot = (s % 4) * 32768
        o = []
        wb = WBUF + 8 * (ks % 2)
        o.append(f"v_xor_b32 v{t0}, {hex(32*j | (0x10000 if slot >= 65536 else 0))}, v{vXb}")
        for i in range(2):
            for t in range(2):
                o.append(f"ds_read_b64_tr_b16 {vr(wb+4*i+2*t,2)}, v{vWA0 if i == 0 else vWA1} offset:{slot%65536 + (16*j+4*t)*256}")
        o.append(f"ds_read_b128 {X(ks)}, v{t0} offset:{slot%65536}")
        return o
    def readsB(kb):
        b, j = divmod(kb, 8); hs = (4 + b) % 8
        wb = WBUF + 4 * (kb % 3)
        return [f"ds_read_b64_tr_b16 {vr(wb+2*t,2)}, v{vWB} offset:{(hs%4)*16384 + (16*j+4*t)*64}" for t in range(2)]

    pend_dma = []
    def enter(tag, new_dma):
        e("s_waitcnt lgkmcnt(0)")
        waitdma(p, tag)
        e("s_barrier")
        pend_dma.extend(new_dma)
    lab = [0]
    def skipblock(cmp, lines):
        lab[0] += 1; n = f"L{L}_sk{lab[0]}"
        e(cmp); e(f"s_cbranch_scc0 {n}")
        for l in lines: e(l)
        p.label(n)

    enter("A0", [])
    for l in readsA(0): e(l)
    side = []
    for ks in range(40):
        nx = ks + 1
        if nx < 40:
            if nx % 4 == 0:
                s = nx // 4
                nd = dmaA(s + 3) if s + 3 <= 9 else dmaB(2 * (s - 7)) + dmaB(2 * (s - 7) + 1)
                enter(f"A{s}", nd)
                if s % 2 == 0:
                    e(f"v_xor_b32 v{vWA0}, 0x10000, v{vWA0}"); e(f"v_xor_b32 v{vWA1}, 0x10000, v{vWA1}")
                if s == 2: side = list(relayout_fin)
            for l in readsA(nx): e(l)
        else:
            enter("B0", dmaB(6) + dmaB(7))
            for l in readsB(0) + readsB(1): e(l)
        wb = WBUF + 8 * (ks % 2)
        for i in range(2):
            c = "0" if ks == 0 else vr(ACC[i], 16)
            a, b = (X(ks), vr(wb + 4 * i, 4)) if isv else (vr(wb + 4 * i, 4), X(ks))
            e(f"v_mfma_f32_32x32x16_bf16 {vr(ACC[i],16)}, {a}, {b}, {c}")
        if pend_dma: emit_dma(pend_dma.pop(0))
        skipblock(f"s_cmp_eq_u32 s{s_ch}, {ks%2}",
                  [x for r in range(4) for x in (f"v_dot2c_f32_bf16 v{vSum}, s{s_ones}, v{XF+4*ks+r}", f"v_dot2c_f32_bf16 v{vSq}, v{XF+4*ks+r}, v{XF+4*ks+r}")])
        skipblock(f"s_cmp_eq_u32 s{s_rt}, {ks%4}",
                  [x for r in range(4) for x in (f"v_dot2c_f32_bf16 v{vCs0}, s{s_ones}, v{wb+r}", f"v_dot2c_f32_bf16 v{vCs1}, s{s_ones}, v{wb+4+r}")])
        for _ in range(3):
            if side: e(side.pop(0))
    e(f"v_lshrrev_b32 v{t1}, 5, v{vLane}")
    e(f"s_lshl_b32 s{s_tmp}, s{s_ch}, 4")
    e(f"v_lshl_add_u32 v{t1}, v{t1}, 3, v{vST}")
    e(f"v_add_u32 v{t1}, s{s_tmp}, v{t1}")
    e(f"ds_write_b64 v{t1}, v[{vSum}:{vSq}]")
    e(f"ds_write_b32 v{vCSw}, v{vCs0} offset:{csoffA(0)}")
    e(f"ds_write_b32 v{vCSw}, v{vCs1} offset:{csoffA(1)}")
    e(f"v_mov_b32 v{vCs0}, 0")

    T = [25, 26, 27, 28, 29, 30, 31, 1]
    Q0, Q1 = 28, 44
    u0, u1, u2 = 25, 26, 27
    def stats_stream():
        o = [f"ds_read_b128 {vr(Q0,4)}, v{vST}", f"ds_read_b128 {vr(Q1,4)}, v{vST} offset:16", None, None, None, None, None, None]
        o += [f"v_add_f32 v{Q0}, v{Q0}, v{Q0+2}", f"v_add_f32 v{Q0+1}, v{Q0+1}, v{Q0+3}", f"v_add_f32 v{Q1}, v{Q1}, v{Q1+2}", f"v_add_f32 v{Q1+1}, v{Q1+1}, v{Q1+3}",
              f"v_add_f32 v{Q0}, v{Q0}, v{Q1}", f"v_add_f32 v{Q0+1}, v{Q0+1}, v{Q1+1}",
              f"v_mul_f32 v{Q0}, {f2u(1/640)}, v{Q0}", f"v_mul_f32 v{Q0+1}, {f2u(1/640)}, v{Q0+1}",
              f"v_fma_f32 v{Q0+1}, -v{Q0}, v{Q0}, v{Q0+1}", f"v_max_f32 v{Q0+1}, 0, v{Q0+1}"]
        o += bf16r(Q0, Q0) + bf16r(Q0 + 1, Q0 + 1)
        o += [f"v_add_f32 v{Q0+1}, {f2u(1e-5)}, v{Q0+1}"] + bf16r(Q0 + 1, Q0 + 1)
        o += [f"v_sqrt_f32 v{Q0+1}, v{Q0+1}"] + bf16r(Q0 + 1, Q0 + 1)
        o += [f"v_rcp_f32 v{vA}, v{Q0+1}", f"v_mul_f32 v{vB}, v{Q0}, v{vA}", f"v_sub_f32 v{vB}, 0, v{vB}"]
        if isv:
            o += [f"ds_write_b32 v{vPVw}, v{vA} offset:128", f"ds_write_b32 v{vPVw}, v{vB} offset:256"]
        else:
            o += [f"v_mul_f32 v{vA2}, s{s_c}, v{vA}", f"v_mul_f32 v{vB2}, s{s_c}, v{vB}"]
        return o
    def cs_stream(off, priv=True):
        o = [f"ds_read_b128 {vr(Q0,4)}, v{vCSr} offset:{off}", f"ds_read_b128 {vr(Q1,4)}, v{vCSr} offset:{off+16}", None, None, None, None, None, None]
        o += [f"v_add_f32 v{Q0}, v{Q0}, v{Q0+1}", f"v_add_f32 v{Q0+2}, v{Q0+2}, v{Q0+3}", f"v_add_f32 v{Q1}, v{Q1}, v{Q1+1}", f"v_add_f32 v{Q1+2}, v{Q1+2}, v{Q1+3}",
              f"v_add_f32 v{Q0}, v{Q0}, v{Q0+2}", f"v_add_f32 v{Q1}, v{Q1}, v{Q1+2}", f"v_add_f32 v{u0}, v{Q0}, v{Q1}"]
        if priv: o += [f"ds_write_b32 v{vPVw}, v{u0}", None, None]
        return o
    def cvt4(acc8, dst):
        return [f"v_cvt_pk_bf16_f32 v{dst+r}, v{acc8+2*r}, v{acc8+2*r+1}" for r in range(4)]
    def qk_stream(i):
        acc = ACC[i]; o = cs_stream(csoffA(i))
        for jp in range(2):
            o += [f"ds_read_b128 {vr(Q0,4)}, v{vPVr} offset:{64*jp}", f"ds_read_b128 {vr(Q1,4)}, v{vPVr} offset:{64*jp+32}"]
            o += [f"v_mul_f32 v{acc+8*jp+r}, v{vA2}, v{acc+8*jp+r}" for r in range(8)]
            o += [f"v_fmac_f32 v{acc+8*jp+r}, v{vB2}, v{(Q0 if r < 4 else Q1)+r%4}" for r in range(8)]
            o += cvt4(acc + 8 * jp, acc + 8 * jp)
            o += [f"s_add_u32 s{s_st}, s{s_tile0}, {i}", f"s_lshl_b32 s{s_tmp}, s{s_ch}, 1", f"s_add_u32 s{s_st}, s{s_st}, s{s_tmp}",
                  f"s_lshl_b32 s{s_st}, s{s_st}, 17", f"s_add_u32 s{s_st}, s{s_st}, {QK_OFF + jp*65536}"]
            o += [f"v_permlane32_swap_b32 v{acc+8*jp}, v{acc+8*jp+2}", f"v_permlane32_swap_b32 v{acc+8*jp+1}, v{acc+8*jp+3}"]
            o += [f"buffer_store_dwordx4 {vr(acc+8*jp,4)}, v{vStA}, s[{sWS}:{sWS+3}], s{s_st} offen"]
        return o
    def v_stream(i):
        acc = ACC[i]; o = cs_stream(csoffA(i), priv=False)
        o += [f"s_lshl_b32 s{s_tmp}, s{s_ch}, 1", f"s_add_u32 s{s_tmp}, s{s_tmp}, s{s_tile0}", f"s_add_u32 s{s_tmp}, s{s_tmp}, {i}",
              f"s_sub_u32 s{s_tmp}, s{s_tmp}, 40", f"s_lshl_b32 s{s_tmp}, s{s_tmp}, 5",
              f"v_and_b32 v{u1}, 31, v{vLane}", f"v_add_u32 v{u1}, s{s_tmp}, v{u1}",
              f"v_mul_u32_u24 v{u2}, 3277, v{u1}", f"v_lshrrev_b32 v{u2}, 16, v{u2}",
              f"v_mul_u32_u24 v{vStA}, 20, v{u2}", f"v_sub_u32 v{u1}, v{u1}, v{vStA}",
              f"v_mul_u32_u24 v{u2}, 81920, v{u2}", f"v_lshl_add_u32 v{u2}, v{u1}, 4, v{u2}",
              f"v_lshrrev_b32 v{u1}, 5, v{vLane}", f"v_mul_u32_u24 v{u1}, 320, v{u1}", f"v_add_u32 v{vStA}, v{u1}, v{u2}",
              f"s_add_u32 s{s_st}, s{s_t5}, {V_OFF}"]
        if i == 1:
            o += [f"s_cmp_ge_u32 s{s_cg}, 12\ns_cselect_b32 s{s_tmp}, s{s_ch}, 0\ns_cmp_eq_u32 s{s_tmp}, 1\ns_cselect_b32 s{s_st}, {OOB}, s{s_st}"]
        for j in range(4):
            o += [f"ds_read_b128 {vr(Q0,4)}, v{vPVr} offset:{128+32*j}", f"ds_read_b128 {vr(Q1,4)}, v{vPVr} offset:{256+32*j}", None, None, None, None]
            o += [f"v_mul_f32 v{acc+4*j+r}, v{Q0+r}, v{acc+4*j+r}" for r in range(4)]
            o += [f"v_fmac_f32 v{acc+4*j+r}, v{u0}, v{Q1+r}" for r in range(4)]
            if j % 2 == 1:
                jp = j // 2
                o += cvt4(acc + 8 * jp, acc + 8 * jp)
                o += [f"buffer_store_dwordx4 {vr(acc+8*jp,4)}, v{vStA}, s[{sWS}:{sWS+3}], s{s_st} offen offset:{640*jp}"]
        return o
    def glu_stream(acc, ps):
        o = cs_stream(csoffB(ps))
        o += [f"ds_read_b128 {vr(Q0,4)}, v{vPVr}", f"ds_read_b128 {vr(Q1,4)}, v{vPVr} offset:32"]
        o += [f"v_mul_f32 v{acc+r}, v{vA2}, v{acc+r}" for r in range(8)]
        o += [f"v_fmac_f32 v{acc+r}, v{vB2}, v{(Q0 if r < 4 else Q1)+r%4}" for r in range(8)]
        o += [f"ds_read_b128 {vr(Q0,4)}, v{vPVr} offset:64", f"ds_read_b128 {vr(Q1,4)}, v{vPVr} offset:96"]
        o += [f"v_exp_f32 v{acc+r}, v{acc+r}" for r in range(8)]
        o += [f"v_mul_f32 v{acc+8+r}, v{vA}, v{acc+8+r}" for r in range(8)]
        o += [f"v_add_f32 v{acc+r}, 1.0, v{acc+r}" for r in range(8)]
        o += [f"v_fmac_f32 v{acc+8+r}, v{vB}, v{(Q0 if r < 4 else Q1)+r%4}" for r in range(8)]
        o += [f"v_rcp_f32 v{acc+r}, v{acc+r}" for r in range(8)]
        o += [f"s_add_u32 s{s_st}, s{s_hst}, {2*ps*1024}", f"v_lshlrev_b32 v{u1}, 4, v{vLane}"]
        o += [f"v_mul_f32 v{acc+r}, v{acc+r}, v{acc+8+r}" for r in range(8)]
        o += cvt4(acc, acc)
        o += [f"buffer_store_dwordx4 {vr(acc,4)}, v{u1}, s[{sWS}:{sWS+3}], s{s_st} offen"]
        return o
    gate_consts = [f"v_mul_f32 v{vA2}, {f2u(-LOG2E)}, v{vA}", f"v_mul_f32 v{vB2}, {f2u(-LOG2E)}, v{vB}"]

    accB = [ACC[2], ACC[0], ACC[1]]
    side = []
    for kb in range(120):
        ps, kk = divmod(kb, 40)
        nx = kb + 2
        if nx < 120:
            if nx % 8 == 0:
                b = nx // 8
                enter(f"B{b}", dmaB(b + 7) if b + 7 <= 14 else [])
                if (4 + b) % 4 == 0: e(f"v_xor_b32 v{vWB}, 0x10000, v{vWB}")
                if b == 1: side = stats_stream() + ((v_stream(0) + v_stream(1)) if isv else (qk_stream(0) + qk_stream(1))) + gate_consts
                if b == 6: assert not side; side = glu_stream(accB[0], 0)
                if b == 11: assert not side; side = glu_stream(accB[1], 1)
                nper = -(-len(side) // (30 if b == 1 else 24)) if b in (1, 6, 11) else nper if b > 1 else 0
            for l in readsB(nx): e(l)
        wb = WBUF + 4 * (kb % 3)
        c = "0" if kk == 0 else vr(accB[ps], 16)
        e(f"v_mfma_f32_32x32x16_bf16 {vr(accB[ps],16)}, {vr(wb,4)}, {X(kk)}, {c}")
        if pend_dma: emit_dma(pend_dma.pop(0))
        skipblock(f"s_cmp_eq_u32 s{s_rt}, {kb%4}", [f"v_dot2c_f32_bf16 v{vCs0}, s{s_ones}, v{wb+r}" for r in range(4)])
        if kk == 39:
            e(f"ds_write_b32 v{vCSw}, v{vCs0} offset:{csoffB(ps)}")
            e(f"v_mov_b32 v{vCs0}, 0")
        if side:
            for _ in range(nper):
                if side:
                    x = side.pop(0)
                    if x: e(x)
    assert not side and not pend_dma
    e("s_waitcnt lgkmcnt(0)")
    e("s_barrier")
    for x in glu_stream(accB[2], 2):
        if x: e(x)
    e("s_endpgm")
    resolve_tags(p)
    return finalize(p)

def gen_k1(name="gemm1_kernel"):
    h = Prog(); e = h.e
    e("s_cmp_ge_u32 s2, 256")
    e("s_cbranch_scc1 K1_done")
    e(f"s_and_b32 s{s_tmp}, s2, 7")
    e(f"s_lshr_b32 s{s_tmp2}, s2, 3")
    e(f"s_and_b32 s{s_rb}, s{s_tmp}, 1")
    e(f"s_lshl_b32 s{s_rb}, s{s_rb}, 3")
    e(f"s_and_b32 s{s_t3}, s{s_tmp2}, 7")
    e(f"s_add_u32 s{s_rb}, s{s_rb}, s{s_t3}")
    e(f"s_lshr_b32 s{s_cg}, s{s_tmp}, 1")
    e(f"s_lshl_b32 s{s_cg}, s{s_cg}, 2")
    e(f"s_lshr_b32 s{s_t3}, s{s_tmp2}, 3")
    e(f"s_add_u32 s{s_cg}, s{s_cg}, s{s_t3}")
    e(f"s_lshl_b32 s{s_tile0}, s{s_cg}, 2")
    e(f"s_mul_i32 s{s_t3}, s{s_cg}, 3")
    e(f"s_add_u32 s{s_t3}, s{s_t3}, 12")
    e(f"s_cmp_lt_u32 s{s_cg}, 12")
    e(f"s_cselect_b32 s{s_tile0}, s{s_tile0}, s{s_t3}")
    e(f"s_cmp_ge_u32 s{s_cg}, 10")
    e("s_cbranch_scc1 K1_v")
    body = render(h.ins) + render(gen_variant(False)) + "K1_v:\n" + render(gen_variant(True)) + "K1_done:\n    s_endpgm\n"
    return kernel_text(name, body, 256), kd_text(name, 256), K1_LDS

if __name__ == "__main__":
    t, kd, lds = gen_k1()
    print(len(t.splitlines()), lds)
```

```python
from common import *
HALF = 23040
THRESH = 2.0**60
LDS_FLAG = 131072
K2_LDS = LDS_FLAG + 64 + 2048
LDS_MX = LDS_FLAG + 64
sWS = 8
s_w, s_qg, s_kh, s_hd, s_qb, s_g0, s_gr, s_odd = 16, 17, 18, 19, 20, 21, 22, 23
s_tmp, s_tmp2, s_c, s_retry, s_kso, s_vso, s_m0k, s_m0v, s_slot, s_so = 24, 25, 26, 27, 28, 29, 30, 31, 32, 33
s_vm = 34
s_lo = 36
s_grd = 38
vLane, vK, vKr, vV, vDma, vIdx = 1, 2, 3, 4, 5, 6
t0, t1, t2, t3, t4, t5 = 8, 9, 10, 11, 12, 13
QM = [16, 20]; QR = [24, 26]
KM = [28, 36]; KR = [32, 34]
VB = [40, 48]
SB = [64, 80]; OA = [96, 112]; MC = [128, 144]
def vr(a, n): return f"v[{a}:{a+n-1}]"

def gen_k2(name="attn_kernel"):
    p = Prog(); e = p.e
    e("s_cmp_ge_u32 s2, 256")
    e("s_cbranch_scc1 K2_done", "far")
    e("s_load_dwordx2 s[4:5], s[0:1], 72")
    e(f"v_lshrrev_b32 v{t0}, 6, v0")
    e(f"v_and_b32 v{vLane}, 63, v0")
    e(f"v_readfirstlane_b32 s{s_w}, v{t0}")
    e(f"s_and_b32 s{s_qg}, s{s_w}, 3")
    e(f"s_lshr_b32 s{s_kh}, s{s_w}, 2")
    e(f"s_and_b32 s{s_hd}, s2, 7")
    e(f"s_lshl_b32 s{s_hd}, s{s_hd}, 2")
    e(f"s_bfe_u32 s{s_tmp}, s2, 0x20003")
    e(f"s_add_u32 s{s_hd}, s{s_hd}, s{s_tmp}")
    e(f"s_lshr_b32 s{s_qb}, s2, 5")
    e(f"s_and_b32 s{s_odd}, s{s_hd}, 1")
    e(f"s_lshr_b32 s{s_tmp}, s{s_hd}, 1")
    e(f"s_mul_i32 s{s_tmp}, s{s_tmp}, 5")
    e(f"s_add_u32 s{s_gr}, s{s_tmp}, 2")
    e(f"s_mul_i32 s{s_g0}, s{s_odd}, 3")
    e(f"s_add_u32 s{s_g0}, s{s_g0}, s{s_tmp}")
    e(f"s_sub_u32 s{s_grd}, s{s_gr}, s{s_g0}")
    e(f"s_lshl_b32 s{s_grd}, s{s_grd}, 15")
    e(f"v_lshlrev_b32 v{vDma}, 4, v{vLane}")
    e(f"s_add_u32 s{s_kso}, s{s_g0}, 80")
    e(f"s_lshl_b32 s{s_kso}, s{s_kso}, 15")
    e(f"s_lshl_b32 s{s_tmp}, s{s_kh}, 14")
    e(f"s_add_u32 s{s_kso}, s{s_kso}, s{s_tmp}")
    e(f"s_lshl_b32 s{s_tmp}, s{s_qg}, 10")
    e(f"s_add_u32 s{s_kso}, s{s_kso}, s{s_tmp}")
    e(f"s_mul_i32 s{s_vso}, s{s_hd}, 81920")
    e(f"s_mul_i32 s{s_tmp}, s{s_kh}, {32*1280}")
    e(f"s_add_u32 s{s_vso}, s{s_vso}, s{s_tmp}")
    e(f"s_mul_i32 s{s_tmp}, s{s_qg}, 2560")
    e(f"s_add_u32 s{s_vso}, s{s_vso}, s{s_tmp}")
    e(f"s_add_u32 s{s_vso}, s{s_vso}, {V_OFF}")
    e(f"s_mul_i32 s{s_tmp2}, s{s_kh}, {HALF}")
    e(f"s_add_u32 s{s_m0v}, s{s_tmp2}, s{s_tmp}")
    e(f"s_add_u32 s{s_m0v}, s{s_m0v}, 12288")
    e(f"s_mul_i32 s{s_tmp}, s{s_qg}, 3072")
    e(f"s_add_u32 s{s_m0k}, s{s_tmp2}, s{s_tmp}")
    e("s_waitcnt lgkmcnt(0)")
    srd(p, sWS, 4, WS_END)
    W = f"s[{sWS}:{sWS+3}]"
    def dma(kv=True):
        o = []
        o += [f"s_lshl_b32 s{s_so}, s{s_c}, 12", f"s_add_u32 s{s_so}, s{s_so}, s{s_kso}", f"s_add_u32 m0, s{s_m0k}, s{s_slot}",
              f"buffer_load_dwordx4 v{vDma}, {W}, s{s_so} offen lds",
              f"s_add_u32 s{s_tmp}, s{s_so}, 32768", "s_add_u32 m0, m0, 1024",
              f"buffer_load_dwordx4 v{vDma}, {W}, s{s_tmp} offen lds",
              f"s_add_u32 s{s_tmp}, s{s_so}, s{s_grd}", "s_add_u32 m0, m0, 1024",
              f"buffer_load_dwordx4 v{vDma}, {W}, s{s_tmp} offen lds"]
        if kv:
            o += [f"s_mul_i32 s{s_so}, s{s_c}, 10240", f"s_add_u32 s{s_so}, s{s_so}, s{s_vso}", f"s_add_u32 m0, s{s_m0v}, s{s_slot}"]
            o += [f"buffer_load_dwordx4 v{vDma}, {W}, s{s_so} offen offset:{1024*i} lds" for i in range(3)]
        return o
    e(f"s_mov_b32 s{s_c}, 0"); e(f"s_mov_b32 s{s_slot}, 0"); e(f"s_mov_b32 s{s_retry}, 0")
    p.extend(dma())
    e(f"v_and_b32 v{t0}, 31, v{vLane}")
    e(f"v_lshrrev_b32 v{t1}, 5, v{vLane}")
    e(f"s_lshl_b32 s{s_tmp}, s{s_qb}, 8")
    e(f"s_lshl_b32 s{s_tmp2}, s{s_qg}, 6")
    e(f"s_add_u32 s{s_tmp}, s{s_tmp}, s{s_tmp2}")
    e(f"v_add_u32 v{t2}, s{s_tmp}, v{t0}")
    e(f"v_lshlrev_b32 v{t2}, 4, v{t2}")
    e(f"v_lshl_add_u32 v{t3}, v{t1}, 15, v{t2}")
    e(f"s_lshl_b32 s{s_tmp}, s{s_g0}, 15")
    e(f"buffer_load_dwordx4 {vr(QM[0],4)}, v{t3}, {W}, s{s_tmp} offen")
    e(f"buffer_load_dwordx4 {vr(QM[1],4)}, v{t3}, {W}, s{s_tmp} offen offset:512")
    e(f"v_lshl_add_u32 v{t3}, v{t1}, 30, v{t2}")
    e(f"s_lshl_b32 s{s_tmp}, s{s_gr}, 15")
    e(f"s_lshl_b32 s{s_tmp2}, s{s_odd}, 3")
    e(f"s_add_u32 s{s_tmp}, s{s_tmp}, s{s_tmp2}")
    e(f"buffer_load_dwordx2 {vr(QR[0],2)}, v{t3}, {W}, s{s_tmp} offen")
    e(f"buffer_load_dwordx2 {vr(QR[1],2)}, v{t3}, {W}, s{s_tmp} offen offset:512")
    e(f"s_mov_b32 s{s_c}, 1"); e(f"s_mov_b32 s{s_slot}, 0x10000")
    p.extend(dma())
    e(f"v_and_b32 v{t2}, 0x13, v{t0}")
    e(f"v_bfe_u32 v{t3}, v{t0}, 2, 1")
    e(f"v_lshl_add_u32 v{t2}, v{t3}, 3, v{t2}")
    e(f"v_bfe_u32 v{t3}, v{t0}, 3, 1")
    e(f"v_lshl_add_u32 v{t2}, v{t3}, 2, v{t2}")
    e(f"v_lshlrev_b32 v{t2}, 4, v{t2}")
    e(f"v_lshl_add_u32 v{t4}, v{t1}, 10, v{t2}")
    e(f"s_lshl_b32 s{s_tmp}, s{s_odd}, 3")
    e(f"s_add_u32 s{s_tmp}, s{s_tmp}, 2048")
    e(f"v_add_u32 v{t5}, s{s_tmp}, v{t2}")
    e(f"s_mul_i32 s{s_tmp2}, s{s_kh}, {HALF}")
    e(f"v_add_u32 v{vK}, s{s_tmp2}, v{t4}")
    e(f"v_add_u32 v{vKr}, s{s_tmp2}, v{t5}")
    e(f"v_mul_u32_u24 v{vV}, 320, v{t1}")
    e(f"v_lshl_add_u32 v{vV}, v{t0}, 4, v{vV}")
    e(f"s_add_u32 s{s_tmp2}, s{s_tmp2}, 12288")
    e(f"v_add_u32 v{vV}, s{s_tmp2}, v{vV}")
    e(f"v_mov_b32 v{vIdx}, 0xdddddddd")
    e(f"s_mov_b32 s{s_vm}, 0x000fffff"); e(f"s_mov_b32 s{s_vm+1}, 0x000fffff")
    e(f"s_mov_b32 s{s_lo}, -1"); e(f"s_mov_b32 s{s_lo+1}, 0")
    e(f"v_cmp_eq_u32 vcc, 20, v{t0}")
    e(f"v_cmp_eq_u32 s[{40}:{41}], 24, v{t0}")
    e(f"s_or_b64 vcc, vcc, s[40:41]")
    e(f"v_mov_b32 v{t2}, 0x3f803f80")
    e(f"v_cndmask_b32 v{t2}, 0, v{t2}, vcc")
    for r in range(16): e(f"v_mov_b32 v{VB[0]+r}, v{t2}")
    e(f"v_mov_b32 v{t2}, 0"); e(f"v_mov_b32 v{t3}, {LDS_FLAG}")
    e(f"ds_write_b32 v{t3}, v{t2}")
    e("s_waitcnt vmcnt(6) lgkmcnt(0)")
    e("s_barrier")
    e(f"ds_read_b128 {vr(KM[0],4)}, v{t4}")
    e(f"ds_read_b64 {vr(KR[0],2)}, v{t5}")
    def qk(dst, kb, a, c):
        return [f"v_mfma_f32_32x32x8_bf16 {vr(dst,16)}, {vr(KR[kb],2)}, {vr(QR[a],2)}, {c}",
                f"v_mfma_f32_32x32x16_bf16 {vr(dst,16)}, {vr(KM[kb],4)}, {vr(QM[a],4)}, {vr(dst,16)}"]
    def rowmax(dst, src, init=None):
        o = [f"v_max3_f32 v{dst}, v{src}, v{src+1}, v{src+2 if init is None else init}"]
        r = 3 if init is None else 2
        while r < 16:
            o.append(f"v_max3_f32 v{dst}, v{dst}, v{src+r}, v{src+min(r+1,15)}"); r += 2
        return o
    def setm(a, m):
        o = [f"v_mov_b32 v{t2}, v{m}", f"v_permlane32_swap_b32 v{t2}, v{m}", f"v_max_f32 v{m}, v{t2}, v{m}", f"v_sub_f32 v{MC[a]}, 0, v{m}"]
        o += [f"v_mov_b32 v{MC[a]+r}, v{MC[a]}" for r in range(1, 16)]
        return o
    for a in range(2): p.extend(qk(SB[a], 0, a, "0"))
    for a in range(2):
        p.extend(rowmax(t3, SB[a])); p.extend(setm(a, t3))
    p.label("K2_retry")
    e(f"ds_read_b128 {vr(KM[0],4)}, v{vK}")
    e(f"ds_read_b64 {vr(KR[0],2)}, v{vKr}")
    e(f"s_mov_b64 exec, s[{s_vm}:{s_vm+1}]")
    e(f"ds_read_b128 {vr(VB[0],4)}, v{vV}")
    e(f"ds_read_b128 {vr(VB[0]+4,4)}, v{vV} offset:640")
    e("s_mov_b64 exec, -1")
    for r in range(32): e(f"v_mov_b32 v{OA[0]+r}, 0")
    for r in range(8): e(f"v_mov_b32 v{SB[1]+8+r}, 0")
    p.extend(qk(SB[0], 0, 0, vr(MC[0], 16)))
    e(f"s_mov_b32 s{s_c}, 2"); e(f"s_mov_b32 s{s_slot}, 0")
    e("s_waitcnt lgkmcnt(0)")
    e("s_nop 7")
    e(".p2align 6")
    p.label("K2_loop")
    for t in range(8):
        for a in range(2):
            P, N = SB[a], SB[1 - a]
            ex = lambda i: e(f"v_exp_f32 v{P+i}, v{P+i}")
            vprev = VB[(t + a + 1) % 2]
            kb = (t + a) % 2
            q = qk(N, kb, 1 - a, vr(MC[1 - a], 16))
            ex(0); ex(1)
            e(f"v_smfmac_f32_32x32x32_bf16 {vr(OA[1-a],16)}, {vr(vprev+4,4)}, {vr(N+8,8)}, v{vIdx}")
            if a == 1: e("s_waitcnt lgkmcnt(0)")
            if t == 7 and a == 0:
                e("s_waitcnt vmcnt(0) lgkmcnt(0)")
                e("s_barrier")
            ex(2); ex(3)
            e(q[0])
            ex(4); ex(5); ex(6)
            e(q[1])
            tn = (t + 1) % 8
            if a == 0:
                if t == 7:
                    for r in (vK, vKr, vV): e(f"v_xor_b32 v{r}, 0x10000, v{r}")
                else:
                    e("s_waitcnt lgkmcnt(0)")
                off = (tn // 2) * 3072 + (tn % 2) * 512
                e(f"ds_read_b128 {vr(KM[1-kb],4)}, v{vK} offset:{off}")
                e(f"ds_read_b64 {vr(KR[1-kb],2)}, v{vKr} offset:{off}")
            ex(7); ex(8); ex(9); ex(10)
            e(f"v_smfmac_f32_32x32x32_bf16 {vr(OA[a],16)}, {vr(VB[t%2],4)}, {vr(P,8)}, v{vIdx}")
            if a == 1:
                e(f"s_mov_b64 exec, s[{s_vm}:{s_vm+1}]")
                e(f"ds_read_b128 {vr(VB[tn%2],4)}, v{vV} offset:{tn*1280}")
                e(f"ds_read_b128 {vr(VB[tn%2]+4,4)}, v{vV} offset:{tn*1280+640}")
                e("s_mov_b64 exec, -1")
            if t == 7 and a == 0:
                e(f"s_cmp_ge_u32 s{s_c}, 4")
                e("s_cbranch_scc1 K2_nodma", "far")
                p.extend(dma())
                p.label("K2_nodma")
                e(f"s_xor_b32 s{s_slot}, s{s_slot}, 0x10000")
            for i in range(11, 16): ex(i)
    e(f"s_add_u32 s{s_c}, s{s_c}, 1")
    e(f"s_cmp_lt_u32 s{s_c}, 6")
    e("s_cbranch_scc1 K2_loop")
    e(f"v_smfmac_f32_32x32x32_bf16 {vr(OA[1],16)}, {vr(VB[1]+4,4)}, {vr(SB[1]+8,8)}, v{vIdx}")
    e("s_waitcnt lgkmcnt(0)")
    e(f"v_maximum3_f32 v{t0}, |v{OA[0]}|, |v{OA[0]+1}|, |v{OA[0]+2}|")
    regs = [OA[0] + r for r in range(3, 13)] + [OA[1] + r for r in range(13)] + [OA[1]]
    for i in range(0, len(regs), 2): e(f"v_maximum3_f32 v{t0}, v{t0}, |v{regs[i]}|, |v{regs[i+1]}|")
    e(f"v_mov_b32 v{t1}, {f2u(THRESH)}")
    e(f"v_mov_b32 v{t3}, {LDS_FLAG}")
    e(f"v_cmp_nlt_f32 vcc, v{t0}, v{t1}")
    e("s_cbranch_vccz K2_ok", "far")
    e(f"ds_write_b32 v{t3}, v{t1}")
    p.label("K2_ok")
    e(f"s_cmp_eq_u32 s{s_kh}, 1")
    e("s_cbranch_scc0 K2_noswap")
    for r in range(16): e(f"v_swap_b32 v{OA[0]+r}, v{OA[1]+r}")
    p.label("K2_noswap")
    e(f"s_lshl_b32 s{s_tmp}, s{s_w}, 12")
    e(f"v_add_u32 v{t1}, s{s_tmp}, v{vDma}")
    for j in range(4): e(f"ds_write_b128 v{t1}, {vr(OA[1]+4*j,4)} offset:{1024*j}")
    e(f"v_xor_b32 v{t1}, 0x4000, v{t1}")
    e("s_waitcnt lgkmcnt(0)")
    e("s_barrier")
    e(f"ds_read_b32 v{t0}, v{t3}")
    for j in range(4): e(f"ds_read_b128 {vr(SB[0]+4*j,4)}, v{t1} offset:{1024*j}")
    e(f"v_readfirstlane_b32 s{s_tmp}, v{t0}")
    e(f"s_andn2_b32 s{s_tmp}, s{s_tmp}, s{s_retry}")
    e(f"s_cmp_lg_u32 s{s_tmp}, 0")
    e("s_cbranch_scc1 K2_fallback", "far")
    O = OA[0]
    for r in range(13): e(f"v_add_f32 v{O+r}, v{O+r}, v{SB[0]+r}")
    e(f"v_cndmask_b32 v{t0}, v{O+8}, v{O+12}, s[{s_lo}:{s_lo+1}]")
    e(f"v_rcp_f32 v{t0}, v{t0}")
    for r in range(12): e(f"v_mul_f32 v{O+r}, v{t0}, v{O+r}")
    for r in range(6): e(f"v_cvt_pk_bf16_f32 v{O+r}, v{O+2*r}, v{O+2*r+1}")
    e(f"s_lshl_b32 s{s_tmp}, s{s_qb}, 3")
    e(f"s_lshl_b32 s{s_tmp2}, s{s_qg}, 1")
    e(f"s_add_u32 s{s_tmp}, s{s_tmp}, s{s_tmp2}")
    e(f"s_add_u32 s{s_tmp}, s{s_tmp}, s{s_kh}")
    e(f"s_mul_i32 s{s_tmp}, s{s_tmp}, 136")
    e(f"s_add_u32 s{s_tmp2}, s{s_tmp}, s{s_hd}")
    e(f"s_lshl_b32 s{s_tmp2}, s{s_tmp2}, 10")
    e(f"s_add_u32 s{s_tmp2}, s{s_tmp2}, {HO_OFF + 96*1024}")
    e(f"buffer_store_dwordx4 {vr(O,4)}, v{vDma}, {W}, s{s_tmp2} offen")
    e(f"s_lshr_b32 s{s_tmp2}, s{s_hd}, 2")
    e(f"s_add_u32 s{s_tmp}, s{s_tmp}, s{s_tmp2}")
    e(f"s_lshl_b32 s{s_tmp}, s{s_tmp}, 10")
    e(f"s_bfe_u32 s{s_tmp2}, s{s_hd}, 0x10001")
    e(f"s_lshl_b32 s{s_tmp2}, s{s_tmp2}, 9")
    e(f"s_add_u32 s{s_tmp}, s{s_tmp}, s{s_tmp2}")
    e(f"s_lshl_b32 s{s_tmp2}, s{s_odd}, 3")
    e(f"s_add_u32 s{s_tmp}, s{s_tmp}, s{s_tmp2}")
    e(f"s_add_u32 s{s_tmp}, s{s_tmp}, {HO_OFF + 128*1024}")
    e(f"s_mov_b64 exec, s[{s_lo}:{s_lo+1}]")
    e(f"buffer_store_dwordx2 {vr(O+4,2)}, v{vDma}, {W}, s{s_tmp} offen")
    e("s_endpgm")
    p.label("K2_fallback")
    e("s_waitcnt lgkmcnt(0)")
    e(f"s_mov_b32 s{s_retry}, -1")
    e(f"v_mov_b32 v{t4}, 0xff800000"); e(f"v_mov_b32 v{t5}, 0xff800000")
    e(f"s_mov_b32 s{s_c}, 0"); e(f"s_mov_b32 s{s_slot}, 0")
    p.label("K2_fb_loop")
    e("s_barrier")
    p.extend(dma(False))
    e("s_waitcnt vmcnt(0)")
    e("s_barrier")
    for t in range(8):
        off = (t // 2) * 3072 + (t % 2) * 512
        e(f"ds_read_b128 {vr(KM[0],4)}, v{vK} offset:{off}")
        e(f"ds_read_b64 {vr(KR[0],2)}, v{vKr} offset:{off}")
        for a in range(2): p.extend(qk(SB[a], 0, a, "0"))
        p.extend(rowmax(t4, SB[0], t4)); p.extend(rowmax(t5, SB[1], t5))
    e(f"s_add_u32 s{s_c}, s{s_c}, 1")
    e(f"s_cmp_lt_u32 s{s_c}, 4")
    e("s_cbranch_scc1 K2_fb_loop")
    e(f"s_lshl_b32 s{s_tmp}, s{s_w}, 8")
    e(f"s_add_u32 s{s_tmp}, s{s_tmp}, {LDS_MX}")
    e(f"v_lshl_add_u32 v{t1}, v{vLane}, 2, s{s_tmp}")
    for a, m in ((0, t4), (1, t5)):
        e("s_barrier")
        e(f"ds_write_b32 v{t1}, v{m}")
        e(f"v_subrev_u32 v{t0}, {LDS_MX}, v{t1}")
        e(f"v_xor_b32 v{t0}, 0x400, v{t0}")
        e("s_waitcnt lgkmcnt(0)")
        e("s_barrier")
        e(f"v_add_u32 v{t0}, {LDS_MX}, v{t0}")
        e(f"ds_read_b32 v{t3}, v{t0}")
        e(f"v_max_f32 v{m}, v{m}, v{t3}")
        p.extend(setm(a, m))
    e(f"s_mov_b32 s{s_c}, 0"); e(f"s_mov_b32 s{s_slot}, 0")
    p.extend(dma())
    e(f"s_mov_b32 s{s_c}, 1"); e(f"s_mov_b32 s{s_slot}, 0x10000")
    p.extend(dma())
    e("s_waitcnt vmcnt(0) lgkmcnt(0)")
    e("s_barrier")
    e("s_branch K2_retry")
    p.label("K2_done")
    e("s_endpgm")
    return kernel_text(name, render(finalize(p)), 160), kd_text(name, 160), K2_LDS

if __name__ == "__main__":
    t, kd, lds = gen_k2()
    print(len(t.splitlines()), lds)
```

```python
from common import *
K3_LDS = 163840
sWS, sX, sO = 8, 12, 16
s_w, s_tt, s_cgp, s_tmp, s_tmp2, s_B = 20, 21, 22, 23, 24, 25
s_A = 26
vLane, vL16, vXo = 1, 2, 3
t0, t1, t2, t3 = 4, 5, 6, 7
XR = 8
ACC = 16
ST = 96
def vr(a, n): return f"v[{a}:{a+n-1}]"
def gen_k3(name="outp_kernel", NK=17, K0mul=17, K0add=0):
    p = Prog(); e = p.e
    e("s_cmp_ge_u32 s2, 256")
    e("s_cbranch_scc1 K3_done", "far")
    e("s_load_dwordx2 s[4:5], s[0:1], 72")
    e("s_load_dwordx2 s[6:7], s[0:1], 0")
    e("s_load_dwordx2 s[32:33], s[0:1], 56")
    e(f"v_lshrrev_b32 v{t0}, 6, v0")
    e(f"v_and_b32 v{vLane}, 63, v0")
    e(f"v_readfirstlane_b32 s{s_w}, v{t0}")
    e(f"s_and_b32 s{s_tmp}, s2, 7")
    e(f"s_lshr_b32 s{s_tmp2}, s2, 3")
    e(f"s_lshr_b32 s{s_tt}, s{s_tmp}, 1")
    e(f"s_lshl_b32 s{s_tt}, s{s_tt}, 4")
    e(f"s_and_b32 s{s_cgp}, s{s_tmp2}, 15")
    e(f"s_add_u32 s{s_tt}, s{s_tt}, s{s_cgp}")
    e(f"s_and_b32 s{s_cgp}, s{s_tmp}, 1")
    e(f"s_lshl_b32 s{s_cgp}, s{s_cgp}, 1")
    e(f"s_lshr_b32 s{s_tmp2}, s{s_tmp2}, 4")
    e(f"s_add_u32 s{s_cgp}, s{s_cgp}, s{s_tmp2}")
    e(f"v_lshlrev_b32 v{vL16}, 4, v{vLane}")
    e(f"s_mul_i32 s{s_tmp}, s{s_w}, {K0mul}")
    e(f"s_add_u32 s{s_tmp}, s{s_tmp}, {K0add}")
    e(f"s_mul_i32 s{s_B}, s{s_tt}, 136")
    e(f"s_add_u32 s{s_B}, s{s_B}, s{s_tmp}")
    e(f"s_lshl_b32 s{s_B}, s{s_B}, 10")
    e(f"s_add_u32 s{s_B}, s{s_B}, {HO_OFF}")
    e(f"s_mul_i32 s{s_A}, s{s_cgp}, {5*136}")
    e(f"s_add_u32 s{s_A}, s{s_A}, s{s_tmp}")
    e(f"s_lshl_b32 s{s_A}, s{s_A}, 10")
    e(f"s_add_u32 s{s_A}, s{s_A}, {WB_OFF}")
    for i in range(1, 5): e(f"s_add_u32 s{s_A+i}, s{s_A+i-1}, {136*1024}")
    e("s_waitcnt lgkmcnt(0)")
    srd(p, sWS, 4, WS_END); srd(p, sX, 6, 2048 * 1280); srd(p, sO, 32, 2048 * 1280)
    W = f"s[{sWS}:{sWS+3}]"
    D = 6
    def loads(k):
        o = []
        if k and k % 4 == 0:
            o += [f"s_add_u32 s{r}, s{r}, 4096" for r in [s_B] + [s_A + i for i in range(5)]]
        st = ST + 24 * (k % D)
        o.append(f"buffer_load_dwordx4 {vr(st,4)}, v{vL16}, {W}, s{s_B} offen offset:{1024*(k%4)}")
        for i in range(5): o.append(f"buffer_load_dwordx4 {vr(st+4+4*i,4)}, v{vL16}, {W}, s{s_A+i} offen offset:{1024*(k%4)}")
        return o
    for k in range(min(D, NK)): p.extend(loads(k))
    e(f"v_mul_u32_u24 v{t0}, 6554, v0")
    e(f"v_lshrrev_b32 v{t0}, 16, v{t0}")
    e(f"v_mul_u32_u24 v{t1}, 10, v{t0}")
    e(f"v_sub_u32 v{t1}, v0, v{t1}")
    e(f"s_lshl_b32 s{s_tmp}, s{s_tt}, 5")
    e(f"v_add_u32 v{t2}, s{s_tmp}, v{t0}")
    e(f"v_mul_u32_u24 v{t2}, 1280, v{t2}")
    e(f"v_lshl_add_u32 v{t2}, v{t1}, 5, v{t2}")
    e(f"s_mul_i32 s{s_tmp}, s{s_cgp}, 320")
    e(f"v_add_u32 v{vXo}, s{s_tmp}, v{t2}")
    e(f"v_mov_b32 v{t2}, {OOB}")
    e(f"v_cmp_gt_u32 vcc, 320, v0")
    e(f"v_cndmask_b32 v{vXo}, v{t2}, v{vXo}, vcc")
    e(f"buffer_load_dwordx4 {vr(XR,4)}, v{vXo}, s[{sX}:{sX+3}], 0 offen")
    e(f"buffer_load_dwordx4 {vr(XR+4,4)}, v{vXo}, s[{sX}:{sX+3}], 0 offen offset:16")
    e(f"v_and_b32 v{t2}, 1, v{t1}")
    e(f"v_lshlrev_b32 v{t2}, 2, v{t2}")
    e(f"v_and_b32 v{t3}, 7, v{t0}")
    e(f"v_xor_b32 v{t2}, v{t2}, v{t3}")
    e(f"v_mul_u32_u24 v{t3}, 640, v{t0}")
    e(f"v_lshl_add_u32 v{t3}, v{t2}, 4, v{t3}")
    e(f"v_lshrrev_b32 v{t1}, 1, v{t1}")
    e(f"v_lshl_add_u32 v{t3}, v{t1}, 7, v{t3}")
    e(f"v_and_b32 v{t0}, 31, v{vLane}")
    e(f"v_lshrrev_b32 v{t1}, 5, v{vLane}")
    e(f"v_and_b32 v{t2}, 7, v{t0}")
    e(f"v_xor_b32 v{t1}, v{t1}, v{t2}")
    e(f"v_mul_u32_u24 v{t2}, 640, v{t0}")
    e(f"v_lshl_add_u32 v{t2}, v{t1}, 4, v{t2}")
    e(f"s_mul_i32 s{s_tmp}, s{s_w}, 20480")
    e(f"v_add_u32 v{t2}, s{s_tmp}, v{t2}")
    for k in range(NK):
        st = ST + 24 * (k % D)
        for i in range(5):
            c = "0" if k == 0 else vr(ACC + 16 * i, 16)
            e(f"v_mfma_f32_32x32x16_bf16 {vr(ACC+16*i,16)}, {vr(st+4+4*i,4)}, {vr(st,4)}, {c}")
        if k + D < NK: p.extend(loads(k + D))
    for j in range(4):
        e(f"v_xor_b32 v{t0}, {32*j}, v{t2}")
        for i in range(5): e(f"ds_write_b128 v{t0}, {vr(ACC+16*i+4*j,4)} offset:{128*i}")
    e("s_waitcnt lgkmcnt(0)")
    e("s_barrier")
    e(f"s_cmp_ge_u32 s{s_w}, 5")
    e("s_cbranch_scc1 K3_done", "far")
    R = ST
    for q in range(4):
        e(f"v_xor_b32 v{t0}, {16*q}, v{t3}")
        e(f"v_add_u32 v{t1}, 81920, v{t0}")
        for w in range(8):
            e(f"ds_read_b128 {vr(R+32*q+4*w,4)}, v{t0 if w < 4 else t1} offset:{(w%4)*20480}")
    for q in range(4):
        b = R + 32 * q
        for w in (1, 2, 3, 4, 5, 6, 7):
            for r in range(4): e(f"v_add_f32 v{b+r}, v{b+r}, v{b+4*w+r}")
        for r in range(2):
            x = XR + 2 * q + r
            e(f"v_lshlrev_b32 v{t0}, 16, v{x}")
            e(f"v_and_b32 v{t1}, 0xffff0000, v{x}")
            e(f"v_add_f32 v{b+2*r}, v{b+2*r}, v{t0}")
            e(f"v_add_f32 v{b+2*r+1}, v{b+2*r+1}, v{t1}")
            e(f"v_cvt_pk_bf16_f32 v{x}, v{b+2*r}, v{b+2*r+1}")
    e(f"buffer_store_dwordx4 {vr(XR,4)}, v{vXo}, s[{sO}:{sO+3}], 0 offen")
    e(f"buffer_store_dwordx4 {vr(XR+4,4)}, v{vXo}, s[{sO}:{sO+3}], 0 offen offset:16")
    p.label("K3_done")
    e("s_endpgm")
    return kernel_text(name, render(finalize(p)), 240), kd_text(name, 240), K3_LDS
```

```python
import sys
from k1 import gen_k1
from k2 import gen_k2
from k3 import gen_k3
ref = open("parallel_sum__mha_block__glu_gated_glu__prompt.s.ref").read().splitlines()
hdr = [l for l in ref if l.startswith(";") and "@launch" not in l and "Override launch" not in l and "grid=ceil" not in l]
ks = [("gemm1_kernel", gen_k1), ("attn_kernel", gen_k2), ("outp_kernel", gen_k3)]
parts = [(n,) + g(n) for n, g in ks]
s = "\n".join(hdr) + "\n"
for n, t, kd, lds in parts: s += f"; @launch kernel={n} grid=(256,1,1) block=(512,1,1) lds={lds}\n"
s += '.amdgcn_target "amdgcn-amd-amdhsa--gfx950"\n'
for n, t, kd, lds in parts: s += t
for n, t, kd, lds in parts: s += kd
out = sys.argv[1] if len(sys.argv) > 1 else "parallel_sum__mha_block__glu_gated_glu__prompt.s"
open(out, "w").write(s)
print("written", out, len(s))
```
